```python
import torch

def _softmax(x, axis=-1):
    return torch.softmax(x, dim=axis)
def _gelu(x):
    return torch.nn.functional.gelu(x, approximate="tanh")
def _silu(x):
    return torch.nn.functional.silu(x)
def _sigmoid(x):
    return torch.sigmoid(x)
def _layernorm(x, axis=-1, eps=1e-5):
    m = x.mean(dim=axis, keepdim=True)
    v = x.var(dim=axis, keepdim=True, unbiased=False)
    return (x - m) / torch.sqrt(v + eps)
def _scatter_add(tgt, idx, src, axis=0):
    return tgt.clone().index_add_(axis, idx, src)
def _segment_sum(src, seg, n):
    out = torch.zeros((n,) + src.shape[1:], dtype=src.dtype)
    return out.index_add_(0, seg, src)
def _pad(x, pw):
    flat = tuple(v for pair in reversed(pw) for v in pair)
    return torch.nn.functional.pad(x, flat)

kernel_name = 'parallel_sum__spectral_fnet__geglu_ffn__prompt'

def setup_inputs():

    _w = (lambda a: (lambda t: t.to(torch.bfloat16) if t.is_floating_point() else t)(torch.as_tensor(a)))
    def _A_setup():
        B, S, D = 1, 2048, 640
        ns = torch.arange(S)[:, None] * torch.arange(S)[None, :]
        nd = torch.arange(D)[:, None] * torch.arange(D)[None, :]
        Ws_re = torch.cos(-2.0 * torch.pi * ns / S).to(float)
        Ws_im = torch.sin(-2.0 * torch.pi * ns / S).to(float)
        Wd_re = torch.cos(-2.0 * torch.pi * nd / D).to(float)
        Wd_im = torch.sin(-2.0 * torch.pi * nd / D).to(float)
        return {
            "x": _w((lambda *s: torch.randn(*s, dtype=torch.bfloat16) * 0.05)(B, S, D)),
            "dft_seq_re": _w(Ws_re),
            "dft_seq_im": _w(Ws_im),
            "dft_hid_re": _w(Wd_re),
            "dft_hid_im": _w(Wd_im),
        }
    _A_in = _A_setup()

    def _B_setup():
        B, S, D, F = 1, 2048, 640, 1728
        return {
            "x": _w((lambda *s: torch.randn(*s, dtype=torch.bfloat16) * 0.05)(B, S, D)),
            "w_gate": _w((lambda *s: torch.randn(*s, dtype=torch.bfloat16) * 0.2)(D, F)),
            "w_up": _w((lambda *s: torch.randn(*s, dtype=torch.bfloat16) * 0.2)(D, F)),
            "w_down": _w((lambda *s: torch.randn(*s, dtype=torch.bfloat16) * 0.2)(F, D)),
        }
    _B_in = _B_setup()

    return {
        "A_x": _A_in["x"],
        "A_dft_seq_re": _A_in["dft_seq_re"],
        "A_dft_seq_im": _A_in["dft_seq_im"],
        "A_dft_hid_re": _A_in["dft_hid_re"],
        "A_dft_hid_im": _A_in["dft_hid_im"],
        "B_x": _B_in["x"],
        "B_w_gate": _B_in["w_gate"],
        "B_w_up": _B_in["w_up"],
        "B_w_down": _B_in["w_down"],
    }

def reference(A_x, A_dft_seq_re, A_dft_seq_im, A_dft_hid_re, A_dft_hid_im, B_x, B_w_gate, B_w_up, B_w_down):
    def _A_ref(x, dft_seq_re, dft_seq_im, dft_hid_re, dft_hid_im):
        a = torch.einsum("bsd,ed->bse", x, dft_hid_re)
        b = torch.einsum("bsd,ed->bse", x, dft_hid_im)
        y = torch.einsum("ts,bse->bte", dft_seq_re, a) - torch.einsum("ts,bse->bte", dft_seq_im, b)
        return y

    def _B_ref(x, w_gate, w_up, w_down):
        return (_gelu(x @ w_gate) * (x @ w_up)) @ w_down

    x = A_x
    xn = _layernorm(x, axis=-1)
    return x + _A_ref(xn, A_dft_seq_re, A_dft_seq_im, A_dft_hid_re, A_dft_hid_im) + _B_ref(xn, B_w_gate, B_w_up, B_w_down)
```

```python
KN = "parallel_sum__spectral_fnet__geglu_ffn__prompt_kernel"
class Asm:
    def __init__(self): self.L = []
    def __call__(self, s):
        for l in s.strip("\n").split("\n"): self.L.append("    " + l.strip() if not l.strip().endswith(":") else l.strip())
    def text(self): return "\n".join(self.L) + "\n"
def kernel_head(name):
    return f".globl {name}\n.p2align 8\n.type {name},@function\n{name}:\n"
def kernel_desc(name, vgpr, accum, sgpr=102):
    return f""".amdhsa_kernel {name}
  .amdhsa_next_free_vgpr {vgpr}
  .amdhsa_next_free_sgpr {sgpr}
  .amdhsa_accum_offset {accum}
  .amdhsa_group_segment_fixed_size 0
  .amdhsa_kernarg_size 96
  .amdhsa_user_sgpr_count 2
  .amdhsa_user_sgpr_kernarg_segment_ptr 1
  .amdhsa_system_sgpr_workgroup_id_x 1
  .amdhsa_float_denorm_mode_32 3
  .amdhsa_float_denorm_mode_16_64 3
.end_amdhsa_kernel
"""
def file_text(launches, kernels):
    s = ""
    for (n, g, b, l) in launches:
        s += f"; @launch kernel={n} grid=({g},1,1) block=({b},1,1) lds={l}\n"
    s += '.amdgcn_target "amdgcn-amd-amdhsa--gfx950"\n.text\n'
    for (n, body, v, a) in kernels:
        s += kernel_head(n) + body + "\n"
    s += '.section .rodata,"a"\n'
    for (n, body, v, a) in kernels:
        s += ".p2align 6\n" + kernel_desc(n, v, a)
    return s
def srd(a, d, base, nbytes):
    a(f"s_mov_b32 s{d}, s{base}\ns_mov_b32 s{d+1}, s{base+1}\ns_mov_b32 s{d+2}, {nbytes}\ns_mov_b32 s{d+3}, 0x00020000")
```

```python
import sys, math, struct
from asmlib import *
def f2u(x): return struct.unpack("<I", struct.pack("<f", x))[0]
HF, WF, TM = 0, 8 << 20, 12 << 20
WS_BYTES = 16 << 20
TROWB = 336 * 8
SLOT = 49152
ST = 3 * SLOT
ST_MU, ST_RS, ST_VV, ST_CS = ST, ST + 1024, ST + 2048, ST + 3072
LDS1 = ST + 3072 + 2048
STAMP_OFF = 200 << 20

def stamp_epilogue(a, idx_sgpr_expr, wsb):
    a(f"""
    s_memrealtime s[94:95]
    s_waitcnt lgkmcnt(0)
    s_add_u32 s84, s{wsb}, {STAMP_OFF}
    s_addc_u32 s85, s{wsb+1}, 0
    s_mov_b32 s86, 0x100000
    s_mov_b32 s87, 0x00020000
    v_mov_b32 v10, s90
    v_mov_b32 v11, s91
    v_mov_b32 v12, s92
    v_mov_b32 v13, s93
    v_mov_b32 v14, s94
    v_mov_b32 v15, s95
    v_mov_b32 v16, s97
    v_mov_b32 v17, 0
    s_lshl_b32 s96, s96, 5
    v_mov_b32 v9, s96
    s_mov_b64 exec, 1
    buffer_store_dwordx4 v[10:13], v9, s[84:87], 0 offen
    buffer_store_dwordx4 v[14:17], v9, s[84:87], 0 offen offset:16
    s_waitcnt vmcnt(0)
    """)

def gen_k1(stamps=False, rot=True):
    a = Asm()
    vLane, vRho, vH = 1, 2, 3
    vXo = [4, 5, 6, 7]; vWo = 8
    vXa = [[10, 11, 12, 13], [14, 15, 16, 17]]
    vWa = [18, 19, 20, 21]
    vS = [22, 23]; vQ = [24, 25]; vC = [[26, 27], [28, 29]]
    vOnes, vAlt = 30, 31
    vT = list(range(32, 64))
    ACC = 64
    acc = lambda j, m: ACC + 32 * j + 16 * m
    XF = lambda b, j: 128 + 16 * b + 4 * j
    WFr = lambda b, m: 128 + 16 * b + 8 + 4 * m
    RF = lambda ob, j, u2: 160 + 16 * ob + 8 * j + 4 * u2
    vRt = 192; vRt2 = 200; vRo = 208; vRo2 = 209
    a("s_cmp_ge_u32 s2, 256\ns_cbranch_scc1 K1_end")
    if stamps: a("s_memrealtime s[90:91]")
    a(f"""
    s_load_dwordx2 s[4:5], s[0:1], 0
    s_load_dwordx4 s[40:43], s[0:1], 24
    s_load_dwordx4 s[44:47], s[0:1], 48
    s_load_dwordx2 s[48:49], s[0:1], 64
    s_load_dwordx2 s[50:51], s[0:1], 88
    v_lshrrev_b32 v{vT[0]}, 6, v0
    v_and_b32 v{vLane}, 63, v0
    v_and_b32 v{vRho}, 31, v0
    v_readfirstlane_b32 s28, v{vT[0]}
    v_bfe_u32 v{vH}, v0, 5, 1
    s_and_b32 s52, s2, 7
    s_lshr_b32 s53, s2, 3
    s_lshr_b32 s29, s52, 2
    s_lshl_b32 s29, s29, 2
    s_lshr_b32 s54, s53, 3
    s_add_u32 s29, s29, s54          ; R
    s_and_b32 s30, s52, 3
    s_lshl_b32 s30, s30, 3
    s_and_b32 s54, s53, 7
    s_add_u32 s30, s30, s54          ; ct
    s_lshr_b32 s55, s28, 1           ; r
    s_and_b32 s56, s28, 1
    s_lshl_b32 s57, s29, 1
    s_lshr_b32 s54, s55, 1
    s_add_u32 s57, s57, s54          ; p
    s_sub_u32 s54, 32, s57
    s_cmp_eq_u32 s57, 0
    s_cselect_b32 s54, 16, s54
    s_bitcmp1_b32 s55, 0
    s_cselect_b32 s57, s54, s57      ; cls
    """)
    if rot:
        a("""
        s_add_u32 s32, s29, s30
        s_mul_i32 s54, s32, 6554
        s_lshr_b32 s54, s54, 16
        s_mul_i32 s54, s54, 10
        s_sub_u32 s32, s32, s54
        """)
    else: a("s_mov_b32 s32, 0")
    a(f"""
    s_movk_i32 s58, 3456
    s_cmp_ge_u32 s30, 27
    s_cselect_b32 s31, 1, 0
    s_cselect_b32 s58, 1280, s58
    s_cselect_b32 s54, 27, 0
    s_sub_u32 s59, s30, s54
    s_lshl_b32 s35, s58, 6
    s_lshl_b32 s36, s28, 12
    s_lshl_b32 s37, s28, 10
    s_add_u32 s37, s37, 32768
    v_lshrrev_b32 v{vT[0]}, 3, v{vLane}
    v_lshlrev_b32 v{vT[1]}, 6, v{vT[0]}
    s_lshl_b32 s54, s56, 5
    s_add_u32 s54, s54, s57
    v_add_u32 v{vT[1]}, s54, v{vT[1]}
    v_mul_u32_u24 v{vT[1]}, 1280, v{vT[1]}
    v_and_b32 v{vT[2]}, 7, v{vLane}
    v_lshrrev_b32 v{vT[3]}, 4, v{vLane}
    v_xor_b32 v{vT[4]}, v{vT[2]}, v{vT[3]}
    v_xor_b32 v{vT[5]}, 4, v{vT[4]}
    v_lshl_add_u32 v{vXo[0]}, v{vT[4]}, 4, v{vT[1]}
    v_lshl_add_u32 v{vXo[1]}, v{vT[5]}, 4, v{vT[1]}
    v_add_u32 v{vXo[1]}, {512*1280}, v{vXo[1]}
    v_add_u32 v{vXo[2]}, {1024*1280}, v{vXo[0]}
    v_add_u32 v{vXo[3]}, {1024*1280}, v{vXo[1]}
    s_lshl_b32 s54, s28, 3
    v_add_u32 v{vT[0]}, s54, v{vT[0]}
    v_mul_u32_u24 v{vT[0]}, s58, v{vT[0]}
    v_and_b32 v{vT[3]}, 1, v{vT[3]}
    v_lshlrev_b32 v{vT[3]}, 2, v{vT[3]}
    v_xor_b32 v{vT[2]}, v{vT[2]}, v{vT[3]}
    v_lshl_add_u32 v{vWo}, v{vT[2]}, 4, v{vT[0]}
    s_lshl_b32 s54, s59, 7
    v_add_u32 v{vWo}, s54, v{vWo}
    s_mul_i32 s14, s58, 640
    s_mov_b32 s15, 0x00020000
    s_mov_b32 s18, s14
    s_mov_b32 s19, 0x00020000
    s_mov_b32 s10, {2048*1280}
    s_mov_b32 s11, 0x00020000
    s_mov_b32 s38, s36
    s_mov_b32 s39, s37
    s_cmp_eq_u32 s31, 1
    s_waitcnt lgkmcnt(0)
    s_mov_b32 s8, s4
    s_mov_b32 s9, s5
    s_cselect_b64 s[12:13], s[40:41], s[44:45]
    s_cselect_b64 s[16:17], s[42:43], s[46:47]
    """)
    def dma_head():
        a("s_lshl_b32 s33, s32, 7\ns_mul_i32 s34, s32, s35\ns_add_u32 s32, s32, 1\ns_cmp_eq_u32 s32, 10\ns_cselect_b32 s32, 0, s32")
    def dma_one(k):
        if k < 4: return f"s_add_u32 m0, s38, {k*1024}\ns_nop 0\nbuffer_load_dwordx4 v{vXo[k]}, s[8:11], s33 offen lds"
        m = k - 4
        return f"s_add_u32 m0, s39, {m*8192}\ns_nop 0\nbuffer_load_dwordx4 v{vWo}, s[{12+4*m}:{15+4*m}], s34 offen lds"
    def dma_chunk():
        dma_head()
        for k in range(6): a(dma_one(k))
        a(f"s_add_u32 s38, s38, {SLOT}\ns_add_u32 s39, s39, {SLOT}")
    dma_chunk()
    srd(a, 20, 50, WS_BYTES)
    srd(a, 24, 48, 1728 * 1280)
    a(f"""
    s_lshl_b32 s60, s2, 3
    s_add_u32 s60, s60, s28
    v_lshrrev_b32 v{vT[6]}, 5, v{vLane}
    v_lshlrev_b32 v{vT[6]}, 2, v{vT[6]}
    v_bfe_u32 v{vT[7]}, v{vLane}, 4, 1
    v_lshl_add_u32 v{vT[6]}, v{vT[7]}, 4, v{vT[6]}
    v_mul_u32_u24 v{vT[6]}, 1280, v{vT[6]}
    v_and_b32 v{vT[7]}, 15, v{vLane}
    v_lshl_add_u32 v{vT[6]}, v{vT[7]}, 1, v{vT[6]}
    s_movk_i32 s65, 8192
    s_movk_i32 s72, 12288
    """)
    def retile(sphi, vo, sst, vd):
        a(f"""
        s_mul_i32 s61, {sphi}, 1639
        s_lshr_b32 s61, s61, 16
        s_mul_i32 s62, s61, 40
        s_sub_u32 s62, {sphi}, s62       ; ntg
        s_mul_i32 s63, s62, 52
        s_lshr_b32 s63, s63, 8
        s_mul_i32 s64, s63, 5
        s_sub_u32 s64, s62, s64          ; nt
        s_mul_i32 s63, s63, 54
        s_add_u32 s63, s63, s61
        s_mul_i32 s63, s63, 5
        s_add_u32 s63, s63, s64
        s_lshl_b32 s63, s63, 10
        s_add_u32 {sst}, s63, {WF}
        s_mul_i32 s61, s61, {32*1280}
        s_lshl_b32 s62, s62, 5
        s_add_u32 s61, s61, s62
        v_add_u32 v{vo}, s61, v{vT[6]}
        """)
        for e in range(8):
            off = (8 * (e >> 2) + (e & 3)) * 1280
            so = {0: "0", 8192: "s65", 12288: "s72"}[off - (off & 4095)]
            a(f"buffer_load_ushort v{vd + e}, v{vo}, s[24:27], {so} offen offset:{off & 4095}")
    retile("s60", vRo, "s66", vRt)
    a("s_mov_b32 s67, 0x7ff00000\ns_cmp_lt_u32 s60, 112\ns_cbranch_scc0 K1_nort2\ns_add_u32 s60, s60, 2048")
    retile("s60", vRo2, "s67", vRt2)
    a("K1_nort2:")
    dma_chunk(); dma_chunk()
    a("s_mov_b32 s38, s36\ns_mov_b32 s39, s37\ns_mov_b32 s73, 0      ; iteration n")
    a(f"""
    s_lshl_b32 s54, s55, 13              ; r*64*128
    s_lshl_b32 s61, s56, 12
    s_add_u32 s54, s54, s61              ; + cw*4096
    v_lshl_add_u32 v{vT[0]}, v{vRho}, 7, s54
    v_bfe_u32 v{vT[1]}, v{vRho}, 1, 3
    v_xor_b32 v{vT[1]}, v{vT[1]}, v{vH}
    v_bfe_u32 v{vT[4]}, v{vLane}, 2, 2       ; r4
    v_lshl_add_u32 v{vT[5]}, v{vH}, 3, v{vT[4]}    ; 8h + r4
    v_lshlrev_b32 v{vT[5]}, 7, v{vT[5]}
    v_bfe_u32 v{vT[2]}, v{vLane}, 4, 1       ; g&1
    v_lshlrev_b32 v{vT[2]}, 1, v{vT[2]}
    v_bfe_u32 v{vT[3]}, v{vLane}, 1, 1       ; c4>>1
    v_add_u32 v{vT[2]}, v{vT[2]}, v{vT[3]}
    s_lshl_b32 s54, s56, 2
    v_add_u32 v{vT[2]}, s54, v{vT[2]}
    v_bfe_u32 v{vT[3]}, v{vLane}, 3, 1       ; r4>>1
    v_lshlrev_b32 v{vT[3]}, 2, v{vT[3]}
    v_xor_b32 v{vT[2]}, v{vT[2]}, v{vT[3]}
    v_lshl_add_u32 v{vT[5]}, v{vT[2]}, 4, v{vT[5]}
    v_and_b32 v{vT[3]}, 1, v{vLane}
    v_lshl_add_u32 v{vT[5]}, v{vT[3]}, 3, v{vT[5]}
    v_mov_b32 v{vOnes}, 0x3f803f80
    v_mov_b32 v{vAlt}, 0xbf803f80
    """)
    for i in range(4):
        a(f"""
        s_add_u32 s54, s55, {i}
        s_and_b32 s54, s54, 3
        s_lshl_b32 s61, s54, 1
        v_xor_b32 v{vT[2]}, s61, v{vT[1]}
        v_lshl_add_u32 v{vXa[0][i]}, v{vT[2]}, 4, v{vT[0]}
        v_xor_b32 v{vXa[1][i]}, 4096, v{vXa[0][i]}
        s_lshl_b32 s61, s54, 11
        s_add_u32 s61, s61, 32768
        v_add_u32 v{vWa[i]}, s61, v{vT[5]}
        """)
    for r in vS + vQ + vC[0] + vC[1]: a(f"v_mov_b32 v{r}, 0")
    a(f"v_lshlrev_b32 v{vT[0]}, 2, v0\nv_add_u32 v{vT[0]}, {ST_CS}, v{vT[0]}\nds_write_b32 v{vT[0]}, v{vS[0]}")
    for r in range(ACC, ACC + 64): a(f"v_mov_b32 v{r}, 0")
    a(f"""
    s_cmp_eq_u32 s30, 27
    s_cselect_b32 s68, 1, 0
    s_cmp_eq_u32 s56, 0
    s_cselect_b32 s68, s68, 0
    s_mov_b32 s69, s68
    """)
    def frag_reads(i, b):
        L = []
        for j in range(2): L.append(f"ds_read_b128 v[{XF(b,j)}:{XF(b,j)+3}], v{vXa[j][i]}")
        for m in range(2):
            for t in range(2):
                L.append(f"ds_read_b64_tr_b16 v[{WFr(b,m)+2*t}:{WFr(b,m)+2*t+1}], v{vWa[i]} offset:{m*8192 + t*512}")
        a("\n".join(L))
    def mainloop(dft, tag):
        a(f"K1_loop{tag}:")
        for i in range(4):
            b = i & 1
            extra = [[], [], [], []]
            if i < 3:
                frag_reads(i + 1, b ^ 1)
                a("s_waitcnt lgkmcnt(6)")
            else:
                a("s_waitcnt lgkmcnt(0) vmcnt(6)\ns_barrier")
                frag_reads(0, b ^ 1)
                extra[0] = [dma_one(0), dma_one(1)]; extra[1] = [dma_one(2), dma_one(3)]; extra[2] = [dma_one(4), dma_one(5)]
                extra[3] = [f"s_add_u32 s38, s38, s74\ns_add_u32 s39, s39, s74\ns_cmp_lt_u32 s73, 10"]
            if dft:
                for j in range(4): a(f"v_cndmask_b32 v{WFr(b,1)+j}, v{WFr(b,1)+j}, v{vAlt}, s[68:69]")
            dots = []
            xr = XF(b, 0)
            for j in range(4):
                dots.append(f"v_dot2_f32_bf16 v{vS[j&1]}, v{xr+j}, v{vOnes}, v{vS[j&1]}")
                dots.append(f"v_dot2_f32_bf16 v{vQ[j&1]}, v{xr+j}, v{xr+j}, v{vQ[j&1]}")
            if i == 0:
                for j in range(4):
                    for m in range(2): dots.append(f"v_dot2_f32_bf16 v{vC[m][j&1]}, v{WFr(b,m)+j}, v{vOnes}, v{vC[m][j&1]}")
            if i == 1:
                extra[0] = [f"s_add_u32 s73, s73, 1\ns_mul_i32 s54, s73, 21846\ns_lshr_b32 s54, s54, 16\ns_mul_i32 s54, s54, 3\ns_cmp_eq_u32 s54, s73\ns_cselect_b32 s74, s75, s76"]
                extra[1] = ["s_lshl_b32 s33, s32, 7\ns_mul_i32 s34, s32, s35\ns_add_u32 s32, s32, 1\ns_cmp_eq_u32 s32, 10\ns_cselect_b32 s32, 0, s32"]
                extra[2] = ["s_cmp_ge_u32 s73, 8\ns_cselect_b32 s33, s77, s33\ns_cselect_b32 s34, s77, s34"]
            if i == 2:
                for r in vXa[0] + vXa[1] + vWa: dots.append(f"v_add_u32 v{r}, s74, v{r}")
            per = (len(dots) + 3) // 4
            k = 0
            for m in range(2):
                for j in range(2):
                    A, B = (XF(b, j), WFr(b, m)) if dft else (WFr(b, m), XF(b, j))
                    a(f"v_mfma_f32_32x32x16_bf16 v[{acc(j,m)}:{acc(j,m)+15}], v[{A}:{A+3}], v[{B}:{B+3}], v[{acc(j,m)}:{acc(j,m)+15}]")
                    for d in dots[k*per:(k+1)*per]: a(d)
                    for d in extra[k]: a(d)
                    k += 1
        a(f"s_cbranch_scc1 K1_loop{tag}")
    a(f"s_mov_b32 s75, {(-2*SLOT) & 0xffffffff}\ns_mov_b32 s76, {SLOT}\ns_mov_b32 s77, 0x7ff00000")
    a("s_cmp_eq_u32 s31, 0\ns_cbranch_scc1 K1_norc")
    a(f"s_mov_b32 s54, {f2u(1/64)}\nv_cmp_eq_u32 vcc, 0, v{vRho}")
    for j in range(2):
        a(f"s_xor_b32 s61, s56, {j}\nv_lshl_add_u32 v{vT[0]}, v{vH}, 3, s61\nv_mul_u32_u24 v{vT[0]}, v{vT[0]}, v{vRho}")
        a(f"s_mov_b32 s62, 0x3f803f80\ns_cmp_eq_u32 s61, 1\ns_cselect_b32 s62, 0xbf80bf80, s62\nv_mov_b32 v{vT[20]}, s62")
        for u2 in range(2):
            for e in range(8):
                jc = 2 * (16 * u2 + 8 * (e >> 2) + (e & 3))
                t = vT[1 + e]
                a(f"v_mad_u32_u24 v{t}, v{vRho}, {jc}, v{vT[0]}\nv_and_b32 v{t}, 63, v{t}\nv_cvt_f32_u32 v{t}, v{t}\nv_mul_f32 v{t}, s54, v{t}")
            for e in range(8): a(f"v_cos_f32 v{vT[9+e]}, v{vT[1+e]}")
            for e in range(8): a(f"v_sin_f32 v{vT[1+e]}, v{vT[1+e]}")
            a("s_nop 0")
            for q in range(4):
                a(f"v_cvt_pk_bf16_f32 v{RF(0,j,u2)+q}, v{vT[9+2*q]}, v{vT[10+2*q]}")
                a(f"v_cvt_pk_bf16_f32 v{RF(1,j,u2)+q}, v{vT[1+2*q]}, v{vT[2+2*q]}")
            for q in range(4): a(f"v_cndmask_b32 v{RF(1,j,u2)+q}, v{RF(1,j,u2)+q}, v{vT[20]}, vcc")
    a("K1_norc:")
    a(f"""
    s_waitcnt vmcnt(12) lgkmcnt(0)
    v_lshlrev_b32 v{vT[0]}, 4, v{vLane}
    s_barrier
    """)
    frag_reads(0, 0)
    for q in range(4): a(f"v_lshl_or_b32 v{vRt+q}, v{vRt+2*q+1}, 16, v{vRt+2*q}\nv_lshl_or_b32 v{vRt2+q}, v{vRt2+2*q+1}, 16, v{vRt2+2*q}")
    a(f"""
    buffer_store_dwordx4 v[{vRt}:{vRt+3}], v{vT[0]}, s[20:23], s66 offen
    buffer_store_dwordx4 v[{vRt2}:{vRt2+3}], v{vT[0]}, s[20:23], s67 offen
    """)
    if stamps: a("s_memrealtime s[92:93]\ns_waitcnt lgkmcnt(0)")
    a("s_cmp_eq_u32 s31, 1\ns_cbranch_scc1 K1_loopD")
    mainloop(0, "F")
    a("s_branch K1_post")
    mainloop(1, "D")
    a("K1_post:")
    t0, t1, t2, t3, t4, t5 = vT[0:6]
    a(f"""
    s_nop 1
    v_add_f32 v{t0}, v{vS[0]}, v{vS[1]}
    v_add_f32 v{t2}, v{vQ[0]}, v{vQ[1]}
    v_add_f32 v{t4}, v{vC[0][0]}, v{vC[0][1]}
    v_add_f32 v{t5}, v{vC[1][0]}, v{vC[1][1]}
    v_mov_b32 v{t1}, v{t0}
    v_mov_b32 v{t3}, v{t2}
    s_lshl_b32 s54, s56, 7
    v_lshl_add_u32 v{vT[6]}, v{vRho}, 2, s54
    v_add_u32 v{vT[6]}, {ST_CS}, v{vT[6]}
    v_permlane32_swap_b32 v{t0}, v{t1}
    v_permlane32_swap_b32 v{t2}, v{t3}
    ds_add_f32 v{vT[6]}, v{t4}
    ds_add_f32 v{vT[6]}, v{t5} offset:256
    s_mov_b32 s54, {f2u(1/640)}
    v_add_f32 v{t0}, v{t0}, v{t1}
    v_add_f32 v{t2}, v{t2}, v{t3}
    v_mul_f32 v{t0}, s54, v{t0}          ; mu
    v_mul_f32 v{t2}, s54, v{t2}
    v_fma_f32 v{t2}, -v{t0}, v{t0}, v{t2}
    v_max_f32 v{t2}, 0, v{t2}
    v_add_f32 v{t2}, {f2u(1e-5)}, v{t2}   ; var+eps
    v_rsq_f32 v{t1}, v{t2}
    s_lshl_b32 s54, s28, 7               ; (64 r + 32 cw)*4
    v_lshl_add_u32 v{t3}, v{vRho}, 2, s54
    v_add_u32 v{t3}, {ST}, v{t3}
    ds_write_b32 v{t3}, v{t0}
    ds_write_b32 v{t3}, v{t1} offset:1024
    ds_write_b32 v{t3}, v{t2} offset:2048
    s_waitcnt lgkmcnt(0)
    s_barrier
    s_cmp_eq_u32 s31, 1
    s_cbranch_scc1 K1_epi_dft
    """)
    CSG = 128; CSU = 144; TMP = 160
    vMu = [vT[0], vT[7]]; vRs = [vT[1], vT[8]]; vVv = [vT[2], vT[9]]
    a(f"""
    v_xor_b32 v{t3}, 128, v{t3}
    s_lshl_b32 s54, s56, 7
    v_lshl_add_u32 v{vT[6]}, v{vH}, 4, s54
    v_add_u32 v{vT[6]}, {ST_CS}, v{vT[6]}
    ds_read_b32 v{vMu[1]}, v{t3}
    ds_read_b32 v{vRs[1]}, v{t3} offset:1024
    ds_read_b32 v{vVv[1]}, v{t3} offset:2048
    """)
    for m in range(2):
        for q in range(4):
            d = CSG if m == 0 else CSU
            a(f"ds_read_b128 v[{d+4*q}:{d+4*q+3}], v{vT[6]} offset:{m*256 + q*32}")
    vSt = vT[10]
    a(f"""
    s_lshl_b32 s61, s30, 1
    s_add_u32 s61, s61, s56              ; kstep
    s_mul_i32 s62, s57, 54
    s_add_u32 s62, s62, s61
    s_lshl_b32 s62, s62, 12
    s_sub_u32 s63, 32, s57
    s_cmp_eq_u32 s57, 0
    s_cselect_b32 s63, 0, s63
    s_mul_i32 s63, s63, 54
    s_add_u32 s63, s63, s61
    s_lshl_b32 s63, s63, 12
    s_add_u32 s63, s63, 2048
    s_cmp_eq_u32 s56, 0
    s_cselect_b32 s64, s62, s63          ; j=0
    s_cselect_b32 s65, s63, s62          ; j=1
    v_lshrrev_b32 v{vSt}, 4, v{vRho}
    v_lshlrev_b32 v{vSt}, 10, v{vSt}
    v_lshl_add_u32 v{vSt}, v{vH}, 9, v{vSt}
    v_and_b32 v{vT[11]}, 15, v{vRho}
    v_lshl_add_u32 v{vSt}, v{vT[11]}, 4, v{vSt}
    s_waitcnt lgkmcnt(0)
    """)
    c1 = -2 * math.sqrt(2 / math.pi) * math.log2(math.e); c3 = c1 * 0.044715
    vC1 = [vT[12], vT[13]]; vC3 = [vT[14], vT[15]]
    for j in range(2):
        a(f"v_mul_f32 v{vC1[j]}, {f2u(c1)}, v{vRs[j]}\nv_mul_f32 v{vC3[j]}, v{vRs[j]}, v{vRs[j]}\nv_mul_f32 v{vC3[j]}, v{vC3[j]}, v{vRs[j]}\nv_mul_f32 v{vC3[j]}, {f2u(c3)}, v{vC3[j]}")
    P = 192
    for j in range(2):
        for half in range(2):
            idx = range(8 * half, 8 * half + 8)
            G = lambda i: acc(j, 0) + i
            U = lambda i: acc(j, 1) + i
            Z = lambda i: TMP + (i & 7) + 8 * half + 16 * j
            for i in idx: a(f"v_fma_f32 v{G(i)}, -v{vMu[j]}, v{CSG+i}, v{G(i)}")
            for i in idx: a(f"v_mul_f32 v{Z(i)}, v{G(i)}, v{G(i)}")
            for i in idx: a(f"v_fma_f32 v{Z(i)}, v{Z(i)}, v{vC3[j]}, v{vC1[j]}")
            for i in idx: a(f"v_mul_f32 v{Z(i)}, v{Z(i)}, v{G(i)}")
            for i in idx: a(f"v_exp_f32 v{Z(i)}, v{Z(i)}\nv_fma_f32 v{U(i)}, -v{vMu[j]}, v{CSU+i}, v{U(i)}")
            for i in idx: a(f"v_fma_f32 v{Z(i)}, v{Z(i)}, v{vVv[j]}, v{vVv[j]}")
            for i in idx: a(f"v_rcp_f32 v{Z(i)}, v{Z(i)}\nv_mul_f32 v{G(i)}, v{G(i)}, v{U(i)}")
            for i in idx: a(f"v_mul_f32 v{G(i)}, v{G(i)}, v{Z(i)}")
            pb = P + 8 * j + 4 * half
            for q in range(4): a(f"v_cvt_pk_bf16_f32 v{pb+q}, v{G(8*half+2*q)}, v{G(8*half+2*q+1)}")
            a(f"buffer_store_dwordx4 v[{pb}:{pb+3}], v{vSt}, s[20:23], s{64+j} offen offset:{256*half}")
    a("s_branch K1_done")
    a("K1_epi_dft:")
    MU = 128; RS = 192
    vCs = [vT[0], vT[1]]
    a(f"""
    s_lshl_b32 s54, s28, 7
    v_lshl_add_u32 v{vT[7]}, v{vH}, 4, s54
    v_add_u32 v{vT[7]}, {ST}, v{vT[7]}
    v_xor_b32 v{vT[8]}, 128, v{vT[7]}
    ds_read_b32 v{vCs[0]}, v{vT[6]}
    ds_read_b32 v{vCs[1]}, v{vT[6]} offset:256
    """)
    for j in range(2):
        for q in range(4):
            a(f"ds_read_b128 v[{MU+16*j+4*q}:{MU+16*j+4*q+3}], v{vT[7+j]} offset:{q*32}")
            a(f"ds_read_b128 v[{RS+16*j+4*q}:{RS+16*j+4*q+3}], v{vT[7+j]} offset:{1024 + q*32}")
    a(f"""
    s_lshl_b32 s61, s59, 6
    s_lshl_b32 s62, s56, 5
    s_add_u32 s61, s61, s62
    v_add_u32 v{vT[10]}, s61, v{vRho}         ; e'
    v_mul_u32_u24 v{vT[11]}, {4*32*336}, v{vH}
    v_add_u32 v{vT[10]}, v{vT[10]}, v{vT[11]}
    v_lshlrev_b32 v{vT[10]}, 3, v{vT[10]}
    v_lshlrev_b32 v{vT[11]}, 3, v{vT[11]}
    v_add_u32 v{vT[11]}, {320*8}, v{vT[11]}
    s_mul_i32 s62, s57, {TROWB}
    s_add_u32 s62, s62, {TM}
    s_waitcnt lgkmcnt(0)
    """)
    ZF = 224
    for j in range(2):
        for m in range(2):
            A = acc(j, m)
            for i in range(16): a(f"v_fma_f32 v{A+i}, -v{MU+16*j+i}, v{vCs[m]}, v{A+i}")
            for i in range(16): a(f"v_mul_f32 v{A+i}, v{RS+16*j+i}, v{A+i}")
            for q in range(8): a(f"v_cvt_pk_bf16_f32 v{ZF+16*j+8*m+q}, v{A+2*q}, v{A+2*q+1}")
    a("s_nop 1")
    TA = lambda ob, m: ACC + 32 * ob + 16 * m
    for j in range(2):
        for u2 in range(2):
            for ob in range(2):
                for m in range(2):
                    first = (j == 0 and u2 == 0)
                    z = ZF + 16 * j + 8 * m + 4 * u2
                    c = "0" if first else f"v[{TA(ob,m)}:{TA(ob,m)+15}]"
                    a(f"v_mfma_f32_32x32x16_bf16 v[{TA(ob,m)}:{TA(ob,m)+15}], v[{RF(ob,j,u2)}:{RF(ob,j,u2)+3}], v[{z}:{z+3}], {c}")
    a("s_nop 15")
    PT = 128; PN = 192
    for i in range(16):
        a(f"v_cvt_pk_bf16_f32 v{PT+2*i}, v{TA(0,0)+i}, v{TA(1,0)+i}")
        a(f"v_cvt_pk_bf16_f32 v{PN+2*i}, v{TA(0,1)+i}, v{TA(1,1)+i}")
        a(f"v_cndmask_b32 v{PT+2*i+1}, v{PN+2*i}, 0, s[68:69]")
        off = (8 * (i >> 2) + (i & 3)) * 32 * TROWB
        a(f"s_add_u32 s63, s62, {off}")
        a(f"buffer_store_dwordx2 v[{PT+2*i}:{PT+2*i+1}], v{vT[10]}, s[20:23], s63 offen")
    a("s_cmp_eq_u32 s68, 0\ns_cbranch_scc1 K1_done\ns_mov_b64 exec, s[68:69]")
    for i in range(16):
        off = (8 * (i >> 2) + (i & 3)) * 32 * TROWB
        a(f"v_mov_b32 v{PN+2*i+1}, 0\ns_add_u32 s63, s62, {off}")
        a(f"buffer_store_dwordx2 v[{PN+2*i}:{PN+2*i+1}], v{vT[11]}, s[20:23], s63 offen")
    a("s_mov_b64 exec, -1")
    a("K1_done:")
    if stamps:
        a("s_waitcnt vmcnt(0)\ns_lshl_b32 s96, s2, 3\ns_add_u32 s96, s96, s28\ns_mov_b32 s97, 0")
        stamp_epilogue(a, None, 50)
    a("K1_end:\ns_endpgm")
    return a.text()

RP = 336
REG = 64 * RP
def gen_k2(stamps=False):
    a = Asm()
    vLane = 1; vL16 = 2; vL16b = 3; vTo = 4
    vT = list(range(5, 16))
    ACC = 16
    acc = lambda tq, nt: ACC + 20 * tq + 4 * nt
    ST0 = 96
    HFr = lambda s, tq: ST0 + 36 * s + 4 * tq
    WFr = lambda s, nt: ST0 + 36 * s + 16 + 4 * nt
    vX = 240
    vXo = [248, 249]; vRd = [250, 251]
    a("s_cmp_ge_u32 s2, 256\ns_cbranch_scc1 K2_end")
    if stamps: a("s_memrealtime s[90:91]")
    a(f"""
    s_load_dwordx2 s[4:5], s[0:1], 0
    s_load_dwordx2 s[6:7], s[0:1], 72
    s_load_dwordx2 s[50:51], s[0:1], 88
    v_lshrrev_b32 v{vT[0]}, 6, v0
    v_and_b32 v{vLane}, 63, v0
    v_lshlrev_b32 v{vL16}, 4, v{vLane}
    v_readfirstlane_b32 s28, v{vT[0]}
    v_add_u32 v{vL16b}, 4096, v{vL16}
    s_and_b32 s52, s2, 7
    s_lshr_b32 s53, s2, 3
    s_lshl_b32 s29, s52, 2
    s_lshr_b32 s54, s53, 3
    s_add_u32 s29, s29, s54          ; kappa
    s_and_b32 s30, s53, 7            ; ct2
    s_mul_i32 s31, s28, 7
    s_cmp_eq_u32 s28, 7
    s_cselect_b32 s31, 48, s31
    s_mul_i32 s32, s29, 54
    s_add_u32 s32, s32, s31
    s_lshl_b32 s32, s32, 12          ; H soffset
    s_mul_i32 s33, s30, 54
    s_add_u32 s33, s33, s31
    s_mul_i32 s33, s33, 5120
    s_add_u32 s33, s33, {WF}         ; W soffset
    s_waitcnt lgkmcnt(0)
    """)
    srd(a, 20, 50, WS_BYTES)
    srd(a, 8, 4, 2048 * 1280)
    srd(a, 12, 6, 2048 * 1280)
    def loads(s):
        for nt in range(5):
            if nt < 4: a(f"buffer_load_dwordx4 v[{WFr(s,nt)}:{WFr(s,nt)+3}], v{vL16}, s[20:23], s33 offen offset:{1024*nt}")
            else: a(f"buffer_load_dwordx4 v[{WFr(s,nt)}:{WFr(s,nt)+3}], v{vL16b}, s[20:23], s33 offen")
        for tq in range(4): a(f"buffer_load_dwordx4 v[{HFr(s,tq)}:{HFr(s,tq)+3}], v{vL16}, s[20:23], s32 offen offset:{1024*tq}")
        a("s_add_u32 s32, s32, 4096\ns_add_u32 s33, s33, 5120")
    def mfmas(s, first):
        for tq in range(4):
            for nt in range(5):
                c = "0" if first else f"v[{acc(tq,nt)}:{acc(tq,nt)+3}]"
                a(f"v_mfma_f32_16x16x32_bf16 v[{acc(tq,nt)}:{acc(tq,nt)+3}], v[{WFr(s,nt)}:{WFr(s,nt)+3}], v[{HFr(s,tq)}:{HFr(s,tq)+3}], {c}")
    for s in range(4): loads(s)
    a(f"""
    s_sub_u32 s34, 64, s29
    s_cmp_eq_u32 s29, 0
    s_cselect_b32 s34, 32, s34
    s_mul_i32 s35, s30, 160
    """)
    for rd in range(2):
        t = vT
        a(f"""
        v_add_u32 v{t[0]}, {512*rd}, v0
        v_mul_u32_u24 v{t[1]}, 6554, v{t[0]}
        v_lshrrev_b32 v{t[1]}, 16, v{t[1]}        ; row
        v_mul_u32_u24 v{t[2]}, 10, v{t[1]}
        v_sub_u32 v{t[2]}, v{t[0]}, v{t[2]}       ; cg
        v_mul_u32_u24 v{vRd[rd]}, {RP}, v{t[1]}
        v_lshl_add_u32 v{vRd[rd]}, v{t[2]}, 5, v{vRd[rd]}
        v_mov_b32 v{t[3]}, s29
        v_mov_b32 v{t[4]}, s34
        v_cmp_gt_u32 vcc, 32, v{t[1]}
        v_and_b32 v{t[5]}, 31, v{t[1]}
        s_nop 0
        v_cndmask_b32 v{t[3]}, v{t[4]}, v{t[3]}, vcc
        v_lshl_add_u32 v{t[3]}, v{t[5]}, 6, v{t[3]}   ; t
        v_mul_u32_u24 v{t[3]}, 1280, v{t[3]}
        v_lshl_add_u32 v{t[3]}, v{t[2]}, 4, v{t[3]}
        v_add_u32 v{vXo[rd]}, s35, v{t[3]}
        """)
        if rd == 1:
            a(f"v_cmp_gt_u32 vcc, 128, v0\nv_mov_b32 v{t[4]}, 0x7ff00000\ns_nop 0\nv_cndmask_b32 v{vXo[1]}, v{t[4]}, v{vXo[1]}, vcc")
    a("s_cmp_ge_u32 s28, 6\ns_cbranch_scc1 K2_dftwave")
    for k in range(7):
        s = k % 4
        rem = min(6 - k, 3)
        a(f"s_waitcnt vmcnt({9*rem})")
        if k == 0 and stamps: a("s_memrealtime s[92:93]")
        mfmas(s, k == 0)
        if k + 4 < 7: loads(s)
    a(f"buffer_load_dwordx4 v[{vX}:{vX+3}], v{vXo[0]}, s[8:11], 0 offen\nbuffer_load_dwordx4 v[{vX+4}:{vX+7}], v{vXo[1]}, s[8:11], 0 offen")
    a("s_branch K2_reduce")
    a("K2_dftwave:")
    a(f"""
    s_cmp_ge_u32 s30, 4
    s_cselect_b32 s36, 1, 0           ; mirrored
    s_mul_i32 s37, s30, 80
    v_and_b32 v{vT[0]}, 15, v{vLane}
    v_add_u32 v{vT[1]}, s37, v{vT[0]}          ; e (nt=0)
    v_sub_u32 v{vT[2]}, {640-64}, v{vT[1]}
    s_cmp_eq_u32 s36, 1
    s_cselect_b64 vcc, -1, 0
    v_lshrrev_b32 v{vT[3]}, 4, v{vLane}        ; kg
    v_cndmask_b32 v{vT[1]}, v{vT[1]}, v{vT[2]}, vcc
    v_mul_u32_u24 v{vT[2]}, {2*336}, v{vT[3]}
    v_add_u32 v{vT[1]}, v{vT[1]}, v{vT[2]}
    v_lshlrev_b32 v{vTo}, 3, v{vT[1]}
    s_sub_u32 s38, s28, 6
    s_lshl_b32 s38, s38, 4
    s_lshl_b32 s39, s29, 5
    s_add_u32 s39, s39, s38
    s_mul_i32 s39, s39, {TROWB}
    s_add_u32 s39, s39, {TM}
    """)
    for nt in range(5):
        a(f"s_movk_i32 s54, {nt*128}\ns_cmp_eq_u32 s36, 1\ns_cselect_b32 s{40+nt}, {(4-nt)*128}, s54\ns_add_u32 s{40+nt}, s{40+nt}, s39")
    one, mone = 0x3f800000, 0xbf800000
    a(f"""
    s_cmp_eq_u32 s36, 1
    s_cselect_b32 s46, {mone}, {one}      ; tau
    s_xor_b32 s47, s46, 0x80000000        ; -tau
    s_cmp_eq_u32 s29, 0
    s_mov_b32 s60, {one}
    s_mov_b32 s61, 0
    s_cselect_b32 s62, 0, {mone}
    s_mov_b32 s63, s46
    s_cselect_b32 s64, 0, s46
    s_mov_b32 s65, 0
    s_cselect_b32 s66, 0, {one}
    s_cselect_b32 s67, {one}, 0
    s_cselect_b32 s68, 0, {one}
    s_cselect_b32 s69, 0, s46
    s_cselect_b32 s70, 0, s47
    s_cselect_b32 s71, s46, 0
    s_mov_b32 s72, {f2u(1/2048)}
    """)
    def dft_loads(s, q):
        for nt in range(5):
            a(f"s_add_u32 s54, s{40+nt}, {q*8*TROWB}")
            a(f"buffer_load_dwordx2 v[{WFr(s,nt)}:{WFr(s,nt)+1}], v{vTo}, s[20:23], s54 offen")
            a(f"buffer_load_dwordx2 v[{WFr(s,nt)+2}:{WFr(s,nt)+3}], v{vTo}, s[20:23], s54 offen offset:{TROWB}")
    def twiddles(s, q):
        t = vT
        a(f"""
        v_lshrrev_b32 v{t[0]}, 4, v{vLane}
        v_lshlrev_b32 v{t[0]}, 1, v{t[0]}
        s_add_u32 s54, s38, {8*q}
        v_add_u32 v{t[0]}, s54, v{t[0]}       ; c (cc=0)
        v_and_b32 v{t[1]}, 15, v{vLane}
        v_lshlrev_b32 v{t[1]}, 6, v{t[1]}
        """)
        for tq in range(4):
            sg = tq >> 1
            m = 60 + 6 * sg
            a(f"s_add_u32 s54, s{29 if sg == 0 else 34}, {1024*(tq&1)}\nv_add_u32 v{t[2]}, s54, v{t[1]}    ; t")
            for cc in range(2):
                a(f"""
                v_add_u32 v{t[3]}, {cc}, v{t[0]}
                v_mul_u32_u24 v{t[3]}, v{t[3]}, v{t[2]}
                v_and_b32 v{t[3]}, 2047, v{t[3]}
                v_cvt_f32_u32 v{t[3]}, v{t[3]}
                v_mul_f32 v{t[3]}, s72, v{t[3]}
                v_cos_f32 v{t[4]}, v{t[3]}
                v_sin_f32 v{t[5]}, v{t[3]}
                s_nop 0
                v_mul_f32 v{t[6]}, s{m}, v{t[4]}
                v_mul_f32 v{t[7]}, s{m+1}, v{t[4]}
                v_fma_f32 v{t[7]}, s{m+2}, v{t[5]}, v{t[7]}
                v_mul_f32 v{t[8]}, s{m+3}, v{t[5]}
                v_mul_f32 v{t[9]}, s{m+4}, v{t[4]}
                v_fma_f32 v{t[9]}, s{m+5}, v{t[5]}, v{t[9]}
                v_cvt_pk_bf16_f32 v{HFr(s,tq)+2*cc}, v{t[6]}, v{t[7]}
                v_cvt_pk_bf16_f32 v{HFr(s,tq)+2*cc+1}, v{t[8]}, v{t[9]}
                """)
    waits = [27, 27, 27, 9 + 9 + 10, 9 + 10 + 10, 20, 10, 0]
    for k in range(8):
        s = k % 4
        a(f"s_waitcnt vmcnt({waits[k]})")
        if k == 0 and stamps: a("s_memrealtime s[92:93]")
        mfmas(s, k == 0)
        if k < 2: loads(s)
        elif k < 4:
            dft_loads(s, k - 2)
            a("s_nop 7")
            twiddles(s, k - 2)
            a("s_nop 1")
    a(f"buffer_load_dwordx4 v[{vX}:{vX+3}], v{vXo[0]}, s[8:11], 0 offen\nbuffer_load_dwordx4 v[{vX+4}:{vX+7}], v{vXo[1]}, s[8:11], 0 offen")
    a("K2_reduce:")
    a(f"""
    s_and_b32 s54, s28, 3
    s_mul_i32 s54, s54, {REG}
    v_add_u32 v{vT[0]}, s54, v{vL16}
    s_nop 7
    s_cmp_lt_u32 s28, 4
    s_cbranch_scc1 K2_lo1
    """)
    for i in range(20): a(f"ds_write_b128 v{vT[0]}, v[{ACC+4*i}:{ACC+4*i+3}] offset:{1024*i}")
    a("s_waitcnt lgkmcnt(0)\ns_barrier\ns_branch K2_fin")
    a("K2_lo1:\ns_barrier")
    for i in range(20): a(f"ds_read_b128 v[{ST0+4*i}:{ST0+4*i+3}], v{vT[0]} offset:{1024*i}")
    a(f"""
    v_and_b32 v{vT[1]}, 15, v{vLane}
    v_mul_u32_u24 v{vT[1]}, {RP}, v{vT[1]}
    v_lshrrev_b32 v{vT[2]}, 4, v{vLane}
    v_lshl_add_u32 v{vT[1]}, v{vT[2]}, 4, v{vT[1]}
    v_add_u32 v{vT[1]}, s54, v{vT[1]}
    s_waitcnt lgkmcnt(0)
    """)
    for i in range(80): a(f"v_add_f32 v{ACC+i}, v{ACC+i}, v{ST0+i}")
    for tq in range(4):
        for nt in range(5): a(f"ds_write_b128 v{vT[1]}, v[{acc(tq,nt)}:{acc(tq,nt)+3}] offset:{tq*16*RP + nt*64}")
    a("s_waitcnt lgkmcnt(0)")
    a("K2_fin:\ns_barrier")
    def final(rd):
        B = ST0
        for p in range(4):
            off = p * REG
            if off + 16 <= 65535: a(f"ds_read_b128 v[{B+8*p}:{B+8*p+3}], v{vRd[rd]} offset:{off}\nds_read_b128 v[{B+8*p+4}:{B+8*p+7}], v{vRd[rd]} offset:{off+16}")
        a("s_waitcnt vmcnt(0) lgkmcnt(0)" if rd == 0 else "s_waitcnt lgkmcnt(0)")
        for j in range(8):
            a(f"v_add_f32 v{B+j}, v{B+j}, v{B+8+j}\nv_add_f32 v{B+16+j}, v{B+16+j}, v{B+24+j}")
        for j in range(4):
            a(f"v_lshlrev_b32 v{B+8+2*j}, 16, v{vX+4*rd+j}\nv_and_b32 v{B+9+2*j}, 0xffff0000, v{vX+4*rd+j}")
        for j in range(8): a(f"v_add_f32 v{B+j}, v{B+j}, v{B+16+j}")
        for j in range(8): a(f"v_add_f32 v{B+j}, v{B+j}, v{B+8+j}")
        for j in range(4): a(f"v_cvt_pk_bf16_f32 v{B+32+4*rd+j}, v{B+2*j}, v{B+2*j+1}")
        a(f"buffer_store_dwordx4 v[{B+32+4*rd}:{B+35+4*rd}], v{vXo[rd]}, s[12:15], 0 offen")
    final(0)
    a("s_cmp_ge_u32 s28, 2\ns_cbranch_scc1 K2_done")
    final(1)
    a("K2_done:")
    if stamps:
        a("s_waitcnt vmcnt(0)\ns_lshl_b32 s96, s2, 3\ns_add_u32 s96, s96, s28\ns_add_u32 s96, s96, 2048\ns_mov_b32 s97, 1")
        stamp_epilogue(a, None, 50)
    a("K2_end:\ns_endpgm")
    return a.text()

def build(stamps=False, rot=True):
    return file_text([("p1_kernel", 256, 512, LDS1), ("p2_kernel", 256, 512, 4 * REG)],
                     [("p1_kernel", gen_k1(stamps, rot), 256, 256), ("p2_kernel", gen_k2(stamps), 256, 256)])
if __name__ == "__main__":
    open("v1.s", "w").write(build())
    open("v1_st.s", "w").write(build(stamps=True))
```
